```python
import torch

def _softmax(x, axis=-1):
    return torch.softmax(x, dim=axis)
def _gelu(x):
    return torch.nn.functional.gelu(x, approximate="tanh")
def _silu(x):
    return torch.nn.functional.silu(x)
def _sigmoid(x):
    return torch.sigmoid(x)
def _layernorm(x, axis=-1, eps=1e-5):
    m = x.mean(dim=axis, keepdim=True)
    v = x.var(dim=axis, keepdim=True, unbiased=False)
    return (x - m) / torch.sqrt(v + eps)
def _scatter_add(tgt, idx, src, axis=0):
    return tgt.clone().index_add_(axis, idx, src)
def _segment_sum(src, seg, n):
    out = torch.zeros((n,) + src.shape[1:], dtype=src.dtype)
    return out.index_add_(0, seg, src)
def _pad(x, pw):
    flat = tuple(v for pair in reversed(pw) for v in pair)
    return torch.nn.functional.pad(x, flat)

kernel_name = 'parallel_sum__grouped_kv_mqa__swiglu_ffn__prompt'

def setup_inputs():

    _w = (lambda a: (lambda t: t.to(torch.bfloat16) if t.is_floating_point() else t)(torch.as_tensor(a)))
    def _A_setup():
        B, S, D, H = 1, 2048, 640, 32
        Dh = D // H
        return {
            "x": _w((lambda *s: torch.randn(*s, dtype=torch.bfloat16) * 0.05)(B, S, D)),
            "wq": _w((lambda *s: torch.randn(*s, dtype=torch.bfloat16) * 0.2)(D, H * Dh)),
            "wk": _w((lambda *s: torch.randn(*s, dtype=torch.bfloat16) * 0.2)(D, Dh)),
            "wv": _w((lambda *s: torch.randn(*s, dtype=torch.bfloat16) * 0.1)(D, Dh)),
            "wo": _w((lambda *s: torch.randn(*s, dtype=torch.bfloat16) * 0.1)(H * Dh, D)),
        }
    _A_in = _A_setup()

    def _B_setup():
        B, S, D, F = 1, 2048, 640, 1728
        return {
            "x": _w((lambda *s: torch.randn(*s, dtype=torch.bfloat16) * 0.05)(B, S, D)),
            "w_gate": _w((lambda *s: torch.randn(*s, dtype=torch.bfloat16) * 0.1)(D, F)),
            "w_up": _w((lambda *s: torch.randn(*s, dtype=torch.bfloat16) * 0.1)(D, F)),
            "w_down": _w((lambda *s: torch.randn(*s, dtype=torch.bfloat16) * 0.1)(F, D)),
        }
    _B_in = _B_setup()

    return {
        "A_x": _A_in["x"],
        "A_wq": _A_in["wq"],
        "A_wk": _A_in["wk"],
        "A_wv": _A_in["wv"],
        "A_wo": _A_in["wo"],
        "B_x": _B_in["x"],
        "B_w_gate": _B_in["w_gate"],
        "B_w_up": _B_in["w_up"],
        "B_w_down": _B_in["w_down"],
    }

def reference(A_x, A_wq, A_wk, A_wv, A_wo, B_x, B_w_gate, B_w_up, B_w_down):
    def _A_ref(x, wq, wk, wv, wo):
        B, S, D = x.shape
        H = 32
        Dh = D // H
        q = (lambda x, *d: x.permute(*d))((x @ wq).reshape(B, S, H, Dh), 0, 2, 1, 3)
        k = x @ wk
        v = x @ wv
        scores = torch.einsum("bhqd,bkd->bhqk", q, k) * (Dh ** -0.5)
        p = _softmax(scores, axis=-1)
        o = torch.einsum("bhqk,bkd->bhqd", p, v)
        return (lambda x, *d: x.permute(*d))(o, 0, 2, 1, 3).reshape(B, S, H * Dh) @ wo

    def _B_ref(x, w_gate, w_up, w_down):
        g = _silu(x @ w_gate)
        u = x @ w_up
        return (g * u) @ w_down

    x = A_x
    xn = _layernorm(x, axis=-1)
    return x + _A_ref(xn, A_wq, A_wk, A_wv, A_wo) + _B_ref(xn, B_w_gate, B_w_up, B_w_down)
```

```python
import re
class Asm:
    def __init__(self):
        self.lines = []
        self.vm = []
        self.lg = []
    def e(self, s):
        for ln in s.strip("\n").split("\n"):
            self.lines.append("  " + ln.strip())
    def label(self, s): self.lines.append(s + ":")
    def c(self, s): self.lines.append("  ; " + s)
    def vmem(self, s, tag=None):
        self.e(s); self.vm.append(tag)
        assert len(self.vm) <= 63, "vmcnt overflow"
    def lds(self, s, tag=None):
        self.e(s); self.lg.append(tag)
    def wait(self, vm=None, lg=None):
        parts = []
        if vm is not None:
            if vm == "all": n = 0
            else:
                idx = [i for i, t in enumerate(self.vm) if t == vm]
                n = len(self.vm) - 1 - idx[-1] if idx else None
            if n is not None and n < len(self.vm):
                parts.append(f"vmcnt({n})"); self.vm = self.vm[len(self.vm)-n:] if n else []
        if lg is not None:
            if lg == "all": n = 0
            else:
                idx = [i for i, t in enumerate(self.lg) if t == lg]
                n = len(self.lg) - 1 - idx[-1] if idx else None
            if n is not None and n < len(self.lg):
                n = min(n, 15)
                parts.append(f"lgkmcnt({n})"); self.lg = self.lg[len(self.lg)-n:] if n else []
        if parts: self.e("s_waitcnt " + " ".join(parts))
    def stamp(self, i):
        if getattr(self, "stamps", False):
            if i == 0: self.e("s_memrealtime s[54:55]")
            self.e(f"s_memtime s[{60+2*i}:{61+2*i}]")
            self.nst = max(getattr(self, "nst", 0), i+1)
    def stamp_dump(self, wsreg, wavereg, nwaves_per_wg, base):
        if getattr(self, "stamps", False):
            n = self.nst
            self.e("s_memrealtime s[58:59]")
            self.e("s_waitcnt lgkmcnt(0)")
            self.e(f"s_mul_i32 s56, s2, {nwaves_per_wg}")
            self.e(f"s_add_u32 s56, s56, s{wavereg}")
            self.e("s_lshl_b32 s56, s56, 7")
            self.e(f"s_add_u32 s56, s56, {base}")
            self.e("v_mov_b32 v0, s56")
            self.e("s_mov_b64 exec, 1")
            for i in range(n):
                self.e(f"v_mov_b32 v1, s{60+2*i}")
                self.e(f"global_store_dword v0, v1, s[{wsreg}:{wsreg+1}] offset:{4*i}")
                self.e("s_nop 1")
            self.e("v_mov_b32 v1, s54")
            self.e(f"global_store_dword v0, v1, s[{wsreg}:{wsreg+1}] offset:120")
            self.e("s_nop 1")
            self.e("v_mov_b32 v1, s58")
            self.e(f"global_store_dword v0, v1, s[{wsreg}:{wsreg+1}] offset:124")
            self.e("s_mov_b64 exec, -1")
    def text(self): return "\n".join(self.lines) + "\n"

_reg = re.compile(r"\b([vas])(\d+)\b|\b([vas])\[(\d+):(\d+)\]")
def regs_of(op):
    out = []
    for m in _reg.finditer(op):
        if m.group(1): out.append((m.group(1), int(m.group(2))))
        else: out += [(m.group(3), i) for i in range(int(m.group(4)), int(m.group(5))+1)]
    return out
TRANS = ("v_exp_f32", "v_log_f32", "v_rcp_f32", "v_rsq_f32", "v_sqrt_f32", "v_sin_f32", "v_cos_f32")
def mfma_passes(m):
    if "32x32x16" in m or "32x32x8" in m: return 8
    if "16x16x32" in m or "16x16x16" in m: return 4
    raise Exception(m)
def check_hazards(text, name=""):
    hist = []
    nerr = 0
    for ln in text.split("\n"):
        s = ln.split(";")[0].strip()
        if not s or s.endswith(":") or s.startswith("."): continue
        parts = s.split(None, 1); op = parts[0]; rest = parts[1] if len(parts) > 1 else ""
        ops = [o.strip() for o in re.split(r",(?![^\[]*\])", rest)] if rest else []
        base = re.sub(r"_(e32|e64|dpp|sdwa)$", "", op)
        isv = op.startswith("v_"); ismf = op.startswith("v_mfma")
        isvm = op.startswith(("global_", "buffer_", "ds_", "flat_"))
        dst, src = [], []
        if ismf:
            dst = regs_of(ops[0]); src = regs_of(ops[1]) + regs_of(ops[2]); srcC = regs_of(ops[3])
        elif isv:
            if base.startswith("v_cmp"):
                dst = regs_of(ops[0]) if ops[0] != "vcc" else [("vcc", 0)]; src = sum((regs_of(o) for o in ops[1:]), [])
            elif base.startswith("v_permlane") and "swap" in base:
                dst = regs_of(ops[0]) + regs_of(ops[1]); src = list(dst)
            else:
                dst = regs_of(ops[0]); src = sum((regs_of(o) for o in ops[1:]), [])
                if base in ("v_fmac_f32",): src += dst
                if "vcc" in ops[1:]: src.append(("vcc", 0))
        elif isvm:
            isstore = "store" in op or op.startswith("ds_write") or "_lds_" in op or " lds" in s
            if isstore: src = sum((regs_of(o) for o in ops), [])
            else: dst = regs_of(ops[0]); src = sum((regs_of(o) for o in ops[1:]), [])
        else:
            src = sum((regs_of(o) for o in ops[1:]), []) if ops else []
            dst = regs_of(ops[0]) if ops else []
            if ops and ops[0] == "m0": dst = [("m0", 0)]
        dist = 0
        for h in reversed(hist[-40:]):
            need = 0; why = ""
            hd = set(h["dst"])
            if h["mf"]:
                p = h["passes"]
                if ismf:
                    if hd & set(src): need = {4: 8, 8: 12}[p]; why = "mfma D -> mfma A/B"
                    elif hd & set(srcC) and not (h["dst"] == srcC and mfma_passes(op) == p): need = {4: 6, 8: 10}[p]; why = "mfma D -> overlapped C"
                elif (isv or isvm) and (hd & (set(src) | set(dst))): need = {4: 8, 8: 12}[p]; why = "mfma D -> valu/mem"
                if isv and not ismf and set(h["srcC"]) & set(dst):
                    n2 = {4: 3, 8: 7}[p]
                    if n2 > need: need = n2; why = "mfma srcC WAR"
            elif h["v"]:
                if ismf and hd & (set(src) | set(srcC)): need = 2; why = "valu -> mfma"
                if h["trans"] and isv and base not in TRANS and hd & set(src): need = max(need, 1); why = why or "trans -> valu"
                if isv and (base.startswith("v_permlane") or "dpp" in s or "row_" in s) and hd & set(src): need = max(need, 2); why = "valu -> permlane/dpp"
                if base in ("v_readfirstlane_b32", "v_readlane_b32") and hd & set(src): need = max(need, 1); why = "valu -> readlane"
                sg = set(x for x in hd if x[0] in ("s", "vcc"))
                if sg:
                    if isvm and sg & set(src): need = max(need, 5); why = "valu sgpr -> vmem"
                    if isv and sg & set(src): need = max(need, 2); why = "valu sgpr -> valu"
            elif h["store4"]:
                if isv and set(h["src"]) & set(dst): need = 2; why = "store data WAR"
            elif ("m0", 0) in hd and isvm and ("lds" in s): need = 1; why = "m0 -> lds dma"
            if need > dist:
                print(f"HAZARD[{name}] {why}: need {need} have {dist}\n    prod: {h['s']}\n    cons: {s}"); nerr += 1
            dist += h["ws"]
            if dist >= 20: break
        ws = 1
        if op == "s_nop": ws = int(ops[0], 0) + 1
        hist.append(dict(s=s, dst=dst, src=src, ws=ws, mf=ismf, passes=mfma_passes(op) if ismf else 0, srcC=srcC if ismf else [],
                         v=isv and not ismf, trans=base in TRANS, store4=isvm and ("store_dwordx4" in op or "store_dwordx3" in op)))
    return nerr
```

```python
import sys, struct, os
sys.path.insert(0, "work")
from asmlib import Asm, check_hazards
import layout as L
from gen import header, footer, f32
STAMPS = bool(os.environ.get('STAMPS'))

BOFF = 80.0
THR_RESCALE = 2.0**30
THR_REDO = 2.0**64

Q1 = {"a": 8, "b": 16}
Q2 = {"a": 12, "b": 20}
MR = {"a": 14, "b": 22}
O_ = {"a": 32, "b": 48}
S_ = {"a": 64, "b": 80}
P_ = {"a": 96, "b": 104}
KVB = 112
def K1(t): return KVB + 16*(t % 4)
def V1(t): return KVB + 16*(t % 4) + 4
def V2(t): return KVB + 16*(t % 4) + 8
def K2(t): return KVB + 16*(t % 4) + 12
TK1, TV1, TV2, TK2 = 176, 180, 184, 188
TS = 192
NV = 208

def qk(a, x, k1, k2):
    s = S_[x]
    return [f"v_mfma_f32_32x32x16_bf16 v[{s}:{s+15}], v[{k1}:{k1+3}], v[{Q1[x]}:{Q1[x]+3}], 0",
            f"v_mfma_f32_32x32x8_bf16 v[{s}:{s+15}], v[{k2}:{k2+1}], v[{Q2[x]}:{Q2[x]+1}], v[{s}:{s+15}]"]
def pv(a, x, v1, v2):
    o = O_[x]; p = P_[x]
    return [f"v_mfma_f32_32x32x16_bf16 v[{o}:{o+15}], v[{v1}:{v1+3}], v[{p}:{p+3}], v[{o}:{o+15}]",
            f"v_mfma_f32_32x32x16_bf16 v[{o}:{o+15}], v[{v2}:{v2+3}], v[{p+4}:{p+7}], v[{o}:{o+15}]"]
def softmax_ops(x):
    s = S_[x]; p = P_[x]; ops = []
    for i in range(16):
        ops.append(f"v_exp_f32 v{s+i}, v{s+i}")
        if i % 2 == 1 and i >= 3:
            j = (i-3)//2
            ops.append(f"v_cvt_pk_bf16_f32 v{p+j}, v{s+2*j}, v{s+2*j+1}")
    ops.append("s_nop 0")
    ops.append(f"v_cvt_pk_bf16_f32 v{p+7}, v{s+14}, v{s+15}")
    return ops

def set_mslots(a, x, src, t0):
    a.e(f"v_sub_f32 v{t0}, 0, v{src}")
    a.e(f"v_and_b32 v{t0+1}, 0xffff0000, v{t0}")
    a.e(f"v_sub_f32 v{t0}, v{t0}, v{t0+1}")
    a.e(f"v_and_b32 v{t0+2}, 0xffff0000, v{t0}")
    a.e(f"v_sub_f32 v{t0}, v{t0}, v{t0+2}")
    a.e(f"v_lshrrev_b32 v{t0+1}, 16, v{t0+1}")
    a.e(f"v_or_b32 v{t0+1}, v{t0+1}, v{t0+2}")
    a.e(f"v_lshrrev_b32 v{t0}, 16, v{t0}")
    a.e("s_mov_b32 exec_lo, 0")
    a.e(f"v_mov_b32 v{Q2[x]}, v{t0+1}")
    a.e(f"v_mov_b32 v{Q2[x]+1}, v{t0}")
    a.e("s_mov_b32 exec_lo, -1")
    a.e("s_nop 1")

def tile_max(a, x, dst, t):
    s = S_[x]
    a.e(f"v_max3_f32 v{dst}, v{s}, v{s+1}, v{s+2}")
    a.e(f"v_max3_f32 v{t}, v{s+3}, v{s+4}, v{s+5}")
    a.e(f"v_max3_f32 v{dst}, v{dst}, v{s+6}, v{s+7}")
    a.e(f"v_max3_f32 v{t}, v{t}, v{s+8}, v{s+9}")
    a.e(f"v_max3_f32 v{dst}, v{dst}, v{s+10}, v{s+11}")
    a.e(f"v_max3_f32 v{t}, v{t}, v{s+12}, v{s+13}")
    a.e(f"v_max3_f32 v{dst}, v{dst}, v{s+14}, v{s+15}")
    a.e(f"v_max_f32 v{dst}, v{dst}, v{t}")
    a.e(f"v_mov_b32 v{t}, v{dst}")
    a.e("s_nop 1")
    a.e(f"v_permlane32_swap_b32 v{dst}, v{t}")
    a.e(f"v_max_f32 v{dst}, v{dst}, v{t}")

def gen(KERNELS):
    name = "k2_attn_kernel"
    a = Asm(); header(a, name, 256)
    a.stamps = STAMPS; a.stamp(0)
    a.e("s_load_dwordx2 s[12:13], s[0:1], 88")
    a.e("v_and_b32 v1, 63, v0")
    a.e("v_lshrrev_b32 v2, 6, v0")
    a.e("v_and_b32 v3, 31, v0")
    a.e("v_readfirstlane_b32 s3, v2")
    a.e("v_bfe_u32 v4, v0, 5, 1")
    a.e("s_and_b32 s14, s2, 7")
    a.e("s_lshr_b32 s15, s2, 3")
    a.e("s_lshl_b32 s16, s14, 2")
    a.e("s_add_u32 s16, s16, s3")
    a.e("s_mul_i32 s17, s16, 5")
    for dg in range(5):
        a.e(f"s_add_u32 s18, s17, {dg}")
        a.e("s_lshr_b32 s19, s18, 2")
        a.e(f"s_lshl_b32 s{20+dg}, s19, 10")
        a.e("s_and_b32 s19, s18, 1")
        a.e("s_lshl_b32 s19, s19, 9")
        a.e(f"s_add_u32 s{20+dg}, s{20+dg}, s19")
        a.e("s_bfe_u32 s19, s18, 0x10001")
        a.e("s_lshl_b32 s19, s19, 3")
        a.e(f"s_add_u32 s{20+dg}, s{20+dg}, s19")
    a.e("v_lshlrev_b32 v3, 4, v3")
    a.e("s_sub_u32 s18, s21, s20")
    a.e("v_mul_i32_i24 v5, s18, v4")
    a.e("v_add3_u32 v5, v5, v3, s20")
    a.e("s_sub_u32 s18, s23, s22")
    a.e("v_mul_i32_i24 v6, s18, v4")
    a.e("v_add3_u32 v6, v6, v3, s22")
    a.e("v_add_u32 v7, s24, v3")
    a.e("v_lshlrev_b32 v2, 3, v1")
    a.e("v_lshlrev_b32 v1, 4, v1")
    a.e("s_waitcnt lgkmcnt(0)")
    a.e("s_mul_i32 s18, s15, 81920")
    a.e(f"s_add_u32 s18, s18, {L.WS_Q}")
    a.e("s_add_u32 s26, s12, s18")
    a.e("s_addc_u32 s27, s13, 0")
    a.e("s_add_u32 s28, s26, 40960")
    a.e("s_addc_u32 s29, s27, 0")
    a.e(f"s_add_u32 s30, s12, {L.WS_KV}")
    a.e("s_addc_u32 s31, s13, 0")
    a.e("s_mov_b32 s32, s30")
    a.e("s_mov_b32 s33, s31")
    a.e("s_mov_b32 s34, s30")
    a.e("s_mov_b32 s35, s31")
    for x, sb in (("a", 26), ("b", 28)):
        a.vmem(f"global_load_dwordx2 v[{Q1[x]}:{Q1[x]+1}], v5, s[{sb}:{sb+1}]", "q")
        a.vmem(f"global_load_dwordx2 v[{Q1[x]+2}:{Q1[x]+3}], v6, s[{sb}:{sb+1}]", "q")
        a.vmem(f"global_load_dwordx2 v[{Q2[x]}:{Q2[x]+1}], v7, s[{sb}:{sb+1}]", "q")
    def loadK(t):
        a.vmem(f"global_load_dwordx4 v[{K1(t)}:{K1(t)+3}], v1, s[32:33]", ("k", t))
        a.vmem(f"global_load_dwordx2 v[{K2(t)}:{K2(t)+1}], v2, s[32:33] offset:3072", ("k", t))
        a.e("s_add_u32 s32, s32, 4096"); a.e("s_addc_u32 s33, s33, 0")
    def loadV(t):
        a.vmem(f"global_load_dwordx4 v[{V1(t)}:{V1(t)+3}], v1, s[34:35] offset:1024", ("v", t))
        a.vmem(f"global_load_dwordx4 v[{V2(t)}:{V2(t)+3}], v1, s[34:35] offset:2048", ("v", t))
        a.e("s_add_u32 s34, s34, 4096"); a.e("s_addc_u32 s35, s35, 0")
    for t in range(3): loadK(t); loadV(t)
    a.e(f"s_mov_b32 s36, {f32(THR_RESCALE)}")
    for x in "ab":
        for i in range(16): a.e(f"v_mov_b32 v{O_[x]+i}, 0")
    for i in range(8): a.e(f"v_mov_b32 v{P_['b']+i}, 0")
    a.wait(vm=("k", 0))
    a.e("s_mov_b32 exec_lo, 0")
    for x in "ab":
        a.e(f"v_mov_b32 v{Q2[x]}, 0"); a.e(f"v_mov_b32 v{Q2[x]+1}, 0")
    a.e("s_mov_b32 exec_lo, -1")
    a.e("s_nop 1")
    for x in "ab":
        for m in qk(a, x, K1(0), K2(0)): a.e(m)
    a.e("s_nop 15")
    for x in "ab":
        tile_max(a, x, MR[x], TS)
        a.e(f"v_add_f32 v{MR[x]}, {f32(BOFF)}, v{MR[x]}")
        set_mslots(a, x, MR[x], TS)
    for m in qk(a, "a", K1(0), K2(0)): a.e(m)
    a.e("s_nop 15")
    for i in range(8): a.e(f"v_mov_b32 v{V1(3)+i}, 0")
    a.e("s_mov_b32 s37, 0")
    a.stamp(1)
    def interleave(valu, mf, pos):
        out = []; mi = 0
        for i, v in enumerate(valu):
            while mi < len(mf) and pos[mi] == i:
                out.append(mf[mi]); mi += 1
            out.append(v)
        assert mi == len(mf)
        return out
    POS = [0, 5, 11, 17]
    loop_start = len(a.lines)
    a.label("L_k2_loop")
    for u in range(4):
        t = u
        loadK(t+3)
        for ln in interleave(softmax_ops("a"), qk(a, "b", K1(t), K2(t)) + pv(a, "b", V1(t-1), V2(t-1)), POS): a.e(ln)
        a.e(f"v_cmp_nge_f32 vcc, s36, v{O_['a']+12}")
        a.e(f"s_cbranch_vccnz L_k2_rare_a{u}")
        a.label(f"L_k2_ret_a{u}")
        a.e("s_waitcnt vmcnt(8)")
        loadV(t+3)
        for ln in interleave(softmax_ops("b"), qk(a, "a", K1(t+1), K2(t+1)) + pv(a, "a", V1(t), V2(t)), POS): a.e(ln)
        a.e(f"v_cmp_nge_f32 vcc, s36, v{O_['b']+12}")
        a.e(f"s_cbranch_vccnz L_k2_rare_b{u}")
        a.label(f"L_k2_ret_b{u}")
        a.e("s_add_u32 s37, s37, 1")
    a.e("s_cmp_lt_u32 s37, 64")
    a.e("s_cbranch_scc1 L_k2_loop")
    loop_end = len(a.lines)
    body = "\n".join(a.lines[loop_start:loop_end])
    check_hazards(body + "\n" + body, "attn-loop")
    a.vm = []
    a.e("s_nop 1")
    for m in pv(a, "b", V1(3), V2(3)): a.e(m)
    a.e("s_nop 15")
    a.stamp(2)
    a.e(f"s_mov_b32 s38, {f32(THR_REDO)}")
    for x in "ab":
        a.e(f"v_cmp_nle_f32 vcc, v{O_[x]+12}, s38") if False else a.e(f"v_cmp_nge_f32 vcc, s38, v{O_[x]+12}")
        a.e(f"s_cbranch_vccz L_k2_fin_{x}")
        a.e("s_mov_b32 s39, 0")
        a.e(f"s_call_b64 s[40:41], L_k2_rare_{x}")
        a.label(f"L_k2_fin_{x}")
    a.e(f"s_mul_i32 s18, s15, {2*148*1024}")
    a.e(f"s_add_u32 s18, s18, {L.WS_A3}")
    a.e("s_add_u32 s26, s12, s18")
    a.e("s_addc_u32 s27, s13, 0")
    a.e(f"s_add_u32 s28, s26, {148*1024}")
    a.e("s_addc_u32 s29, s27, 0")
    for x, sb in (("a", 26), ("b", 28)):
        o = O_[x]; p = P_[x]
        a.e(f"v_rcp_f32 v{TS}, v{o+12}")
        a.e("s_nop 0")
        a.e(f"v_fma_f32 v{TS+1}, -v{o+12}, v{TS}, 1.0")
        a.e(f"v_fma_f32 v{TS}, v{TS}, v{TS+1}, v{TS}")
        for i in range(12): a.e(f"v_mul_f32 v{o+i}, v{o+i}, v{TS}")
        for i in range(6): a.e(f"v_cvt_pk_bf16_f32 v{p+i}, v{o+2*i}, v{o+2*i+1}")
        a.e(f"global_store_dwordx2 v5, v[{p}:{p+1}], s[{sb}:{sb+1}]")
        a.e(f"global_store_dwordx2 v6, v[{p+2}:{p+3}], s[{sb}:{sb+1}]")
        a.e("s_mov_b32 exec_hi, 0")
        a.e(f"global_store_dwordx2 v7, v[{p+4}:{p+5}], s[{sb}:{sb+1}]")
        a.e("s_mov_b32 exec_hi, -1")
    a.stamp(3)
    a.e("s_waitcnt vmcnt(0)")
    a.stamp(4)
    a.stamp_dump(12, 3, 4, 0x2000000)
    a.e("s_endpgm")
    for u in range(4):
        for x in "ab":
            a.label(f"L_k2_rare_{x}{u}")
            a.e("s_mov_b32 s39, 1")
            a.e(f"s_call_b64 s[40:41], L_k2_rare_{x}")
            a.e(f"s_branch L_k2_ret_{x}{u}")
    for x in "ab":
        o = O_[x]; mr = MR[x]; T = TS
        a.label(f"L_k2_rare_{x}")
        a.e("s_nop 15")
        a.e("s_load_dwordx2 s[46:47], s[0:1], 80")
        a.e(f"s_mov_b32 s38, {f32(THR_REDO)}")
        a.e(f"v_cmp_nge_f32 s[42:43], s38, v{o+12}")
        a.e(f"v_frexp_exp_i32_f32 v{T}, v{o+12}")
        a.e(f"v_add_u32 v{T}, {int(BOFF)}, v{T}")
        a.e(f"v_cmp_nlt_f32 vcc, 0, v{o+12}")
        a.e("s_or_b64 vcc, vcc, s[42:43]")
        a.e("s_nop 1")
        a.e(f"v_cndmask_b32 v{T}, v{T}, 0, vcc")
        a.e(f"v_sub_u32 v{T+1}, 0, v{T}")
        for i in range(16): a.e(f"v_ldexp_f32 v{o+i}, v{o+i}, v{T+1}")
        a.e(f"v_cvt_f32_i32 v{T}, v{T}")
        a.e(f"v_add_f32 v{T+4}, v{mr}, v{T}")
        a.e("s_cmp_eq_u64 s[42:43], 0")
        a.e(f"s_cbranch_scc1 L_k2_noredo_{x}")
        a.e("s_sub_u32 s44, s37, 1")
        a.e("s_lshl_b32 s44, s44, 12")
        a.e("s_add_u32 s44, s30, s44")
        a.e("s_addc_u32 s45, s31, 0")
        a.e(f"global_load_dwordx4 v[{TK1}:{TK1+3}], v1, s[44:45]")
        a.e(f"global_load_dwordx2 v[{TK2}:{TK2+1}], v2, s[44:45] offset:3072")
        a.e(f"global_load_dwordx4 v[{TV1}:{TV1+3}], v1, s[44:45] offset:1024")
        a.e(f"global_load_dwordx4 v[{TV2}:{TV2+3}], v1, s[44:45] offset:2048")
        a.e("s_waitcnt vmcnt(0)")
        for m in qk(a, x, TK1, TK2): a.e(m)
        a.e("s_nop 15")
        tile_max(a, x, T, T+1)
        a.e(f"v_ceil_f32 v{T}, v{T}")
        a.e(f"v_add_f32 v{T}, {f32(BOFF)}, v{T}")
        a.e(f"v_add_f32 v{T}, v{mr}, v{T}")
        a.e(f"v_cndmask_b32 v{T+4}, v{T+4}, v{T}, s[42:43]")
        a.e(f"v_mov_b32 v{T+5}, {f32(3.0e38)}")
        a.e(f"v_cndmask_b32 v{T+5}, v{T+5}, v{T}, s[42:43]")
        a.e("s_mov_b64 exec, s[42:43]")
        for i in range(16): a.e(f"v_mov_b32 v{o+i}, 0")
        a.e("s_mov_b64 exec, -1")
        set_mslots(a, x, T+5, T)
        for m in qk(a, x, TK1, TK2): a.e(m)
        a.e("s_nop 15")
        for ln in softmax_ops(x): a.e(ln)
        a.e("s_nop 1")
        for m in pv(a, x, TV1, TV2): a.e(m)
        a.e("s_nop 15")
        a.label(f"L_k2_noredo_{x}")
        a.e(f"v_mov_b32 v{mr}, v{T+4}")
        set_mslots(a, x, mr, T)
        a.e("s_waitcnt lgkmcnt(0)")
        a.e("s_cmp_eq_u64 s[42:43], 0")
        a.e("s_cselect_b32 s44, 0, 4")
        a.e(f"v_mov_b32 v{T}, s44")
        a.e(f"v_mov_b32 v{T+1}, 1")
        a.e("s_mov_b64 exec, 1")
        a.e(f"global_atomic_add v{T}, v{T+1}, s[46:47]")
        a.e("s_mov_b64 exec, -1")
        a.e("s_cmp_eq_u32 s39, 0")
        a.e(f"s_cbranch_scc1 L_k2_rdone_{x}")
        a.e("s_lshl_b32 s44, s37, 12")
        a.e("s_add_u32 s44, s30, s44")
        a.e("s_addc_u32 s45, s31, 0")
        a.e(f"global_load_dwordx4 v[{TK1}:{TK1+3}], v1, s[44:45]")
        a.e(f"global_load_dwordx2 v[{TK2}:{TK2+1}], v2, s[44:45] offset:3072")
        a.e("s_waitcnt vmcnt(0)")
        for m in qk(a, x, TK1, TK2): a.e(m)
        a.e("s_nop 15")
        for ln in softmax_ops(x): a.e(ln)
        a.e("s_nop 1")
        a.label(f"L_k2_rdone_{x}")
        a.e("s_waitcnt vmcnt(0)")
        a.e("s_setpc_b64 s[40:41]")
    footer(a, name)
    KERNELS.append((name, a.text(), 256, 256, 0, NV, 100))
```

```python
import sys, struct, os
sys.path.insert(0, "work")
from asmlib import Asm, check_hazards
import layout as L
from gen import header, footer, f32
STAMPS = bool(os.environ.get('STAMPS'))

def gen(KERNELS):
    name = "k3_out_kernel"
    a = Asm(); header(a, name, 256)
    a.stamps = STAMPS; a.stamp(0)
    NKS = 37; R = 6; SLOT = 5120; D = 5
    ACC = 128; WF = 64; AF = 104
    a.e("s_load_dwordx2 s[4:5], s[0:1], 0")
    a.e("s_load_dwordx2 s[6:7], s[0:1], 32")
    a.e("s_load_dwordx4 s[8:11], s[0:1], 64")
    a.e("s_load_dwordx2 s[12:13], s[0:1], 88")
    a.e("v_and_b32 v1, 63, v0")
    a.e("v_lshrrev_b32 v2, 6, v0")
    a.e("s_nop 0")
    a.e("v_readfirstlane_b32 s3, v2")
    a.e("s_and_b32 s14, s2, 7")
    a.e("s_lshr_b32 s15, s2, 3")
    a.e("s_lshl_b32 s16, s14, 3")
    a.e("s_lshr_b32 s17, s15, 2")
    a.e("s_add_u32 s16, s16, s17")
    a.e("s_and_b32 s17, s15, 3")
    a.e("s_mul_i32 s18, s17, 320")
    a.e("s_mul_i32 s19, s3, 37")
    a.e("v_lshrrev_b32 v2, 4, v1")
    a.e("v_bfe_u32 v3, v1, 2, 2")
    a.e("v_and_b32 v4, 3, v1")
    for i in range(5):
        a.e(f"v_add_u32 v5, {4*i}, v2")
        a.e("v_mul_u32_u24 v6, 52, v5")
        a.e("v_lshrrev_b32 v6, 8, v6")
        a.e("v_mul_u32_u24 v7, 5, v6")
        a.e("v_sub_u32 v7, v5, v7")
        a.e("v_lshl_add_u32 v6, v6, 2, v3")
        a.e("v_mul_u32_u24 v6, 1280, v6")
        a.e("v_lshl_add_u32 v6, v7, 6, v6")
        a.e(f"v_lshl_add_u32 v{8+i}, v4, 4, v6")
    a.e("v_lshrrev_b32 v5, 5, v1")
    a.e("v_mul_u32_u24 v5, 1280, v5")
    a.e("v_lshl_add_u32 v5, v3, 6, v5")
    a.e("v_bfe_u32 v6, v1, 4, 1")
    a.e("v_lshl_add_u32 v5, v6, 5, v5")
    a.e("v_lshl_add_u32 v5, v4, 3, v5")
    a.e(f"s_mul_i32 s20, s3, {R*SLOT}")
    a.e("v_add_u32 v13, s20, v5")
    a.e("v_lshlrev_b32 v14, 4, v1")
    a.e("s_waitcnt lgkmcnt(0)")
    a.e("s_add_u32 s6, s6, s18"); a.e("s_addc_u32 s7, s7, 0")
    a.e("s_add_u32 s8, s8, s18"); a.e("s_addc_u32 s9, s9, 0")
    a.e(f"s_sub_u32 s8, s8, {40*20480}"); a.e("s_subb_u32 s9, s9, 0")
    a.e("s_mul_i32 s21, s16, 148")
    a.e("s_add_u32 s21, s21, s19")
    a.e("s_lshl_b32 s21, s21, 10")
    a.e(f"s_add_u32 s21, s21, {L.WS_A3}")
    a.e("s_add_u32 s22, s12, s21")
    a.e("s_addc_u32 s23, s13, 0")
    def group(i):
        a.e(f"s_add_u32 s24, s19, {i}")
        a.e("s_mul_i32 s25, s24, 20480")
        a.e("s_cmp_lt_u32 s24, 40")
        a.e("s_cselect_b32 s26, s6, s8")
        a.e("s_cselect_b32 s27, s7, s9")
        a.e("s_add_u32 s26, s26, s25")
        a.e("s_addc_u32 s27, s27, 0")
        for j in range(5):
            a.e(f"s_add_u32 m0, s20, {(i % R)*SLOT + j*1024}")
            a.e("s_nop 0")
            a.vmem(f"global_load_lds_dwordx4 v{8+j}, s[26:27]", ("g", i))
        sl = AF + 4*(i % R)
        a.vmem(f"global_load_dwordx4 v[{sl}:{sl+3}], v14, s[22:23] offset:{(i%4)*1024}", ("g", i))
        if i % 4 == 3:
            a.e("s_add_u32 s22, s22, 4096"); a.e("s_addc_u32 s23, s23, 0")
    def tr_reads(i):
        w = WF + 20*(i % 2)
        for t in range(5):
            for which in range(2):
                off = (i % R)*SLOT + which*2560 + t*256
                a.lds(f"ds_read_b64_tr_b16 v[{w+4*t+2*which}:{w+4*t+2*which+1}], v13 offset:{off}", ("w", i))
    for i in range(D): group(i)
    a.wait(vm=("g", 0))
    tr_reads(0)
    for i in range(NKS):
        if i + 1 < NKS:
            a.wait(vm=("g", i+1))
            a.wait(lg=("w", i))
            tr_reads(i+1)
        else:
            a.wait(lg=("w", i))
        if i + D < NKS: group(i + D)
        w = WF + 20*(i % 2); sl = AF + 4*(i % R)
        for t in range(5):
            d = ACC + 16*t
            c = "0" if i == 0 else f"v[{d}:{d+15}]"
            a.e(f"v_mfma_f32_32x32x16_bf16 v[{d}:{d+15}], v[{w+4*t}:{w+4*t+3}], v[{sl}:{sl+3}], {c}")
    a.stamp(1)
    a.e("v_and_b32 v2, 31, v1")
    a.e("s_lshl_b32 s24, s16, 5")
    a.e("v_add_u32 v2, s24, v2")
    a.e("v_mul_u32_u24 v2, 1280, v2")
    a.e("v_lshrrev_b32 v3, 5, v1")
    a.e("v_lshl_add_u32 v2, v3, 3, v2")
    a.e("s_lshl_b32 s24, s3, 4")
    a.e("s_add_u32 s24, s24, s18")
    a.e("v_add_u32 v2, s24, v2")
    for t in range(5):
        a.vmem(f"global_load_dwordx2 v[{20+2*t}:{21+2*t}], v2, s[4:5] offset:{64*t}", "x")
    a.e("s_nop 7")
    a.e("s_barrier")
    a.e("s_mul_i32 s24, s3, 20480")
    a.e("v_add_u32 v3, s24, v14")
    for t in range(5):
        for g in range(4):
            d = ACC + 16*t + 4*g
            a.lds(f"ds_write_b128 v3, v[{d}:{d+3}] offset:{(t*4+g)*1024}")
    a.wait(lg="all")
    a.e("s_barrier")
    a.e("s_lshl_b32 s24, s3, 10")
    a.e("v_add_u32 v3, s24, v14")
    a.e("v_add_u32 v4, 40960, v3")
    for t in range(5):
        for w in range(4):
            r = 64 + 16*t + 4*w
            base = "v3" if w < 2 else "v4"
            a.lds(f"ds_read_b128 v[{r}:{r+3}], {base} offset:{((w%2)*5+t)*4096}", ("p", t))
    a.wait(vm="x")
    for t in range(5):
        a.wait(lg=("p", t))
        r = 64 + 16*t
        for i in range(4):
            a.e(f"v_add_f32 v{r+i}, v{r+i}, v{r+4+i}")
            a.e(f"v_add_f32 v{r+8+i}, v{r+8+i}, v{r+12+i}")
        a.e(f"v_lshlrev_b32 v30, 16, v{20+2*t}"); a.e(f"v_and_b32 v31, 0xffff0000, v{20+2*t}")
        a.e(f"v_lshlrev_b32 v32, 16, v{21+2*t}"); a.e(f"v_and_b32 v33, 0xffff0000, v{21+2*t}")
        for i in range(4): a.e(f"v_add_f32 v{r+i}, v{r+i}, v{r+8+i}")
        for i in range(4): a.e(f"v_add_f32 v{r+i}, v{r+i}, v{30+i}")
        a.e(f"v_cvt_pk_bf16_f32 v{40+2*t}, v{r}, v{r+1}")
        a.e(f"v_cvt_pk_bf16_f32 v{41+2*t}, v{r+2}, v{r+3}")
        a.e(f"global_store_dwordx2 v2, v[{40+2*t}:{41+2*t}], s[10:11] offset:{64*t}")
    a.stamp(2)
    a.e("s_waitcnt vmcnt(0)")
    a.stamp(3)
    a.stamp_dump(12, 3, 4, 0x2000000)
    footer(a, name)
    KERNELS.append((name, a.text(), 256, 256, 4*R*SLOT, 208, 100))
```

```python
import sys, struct
sys.path.insert(0, "work")
from asmlib import Asm, check_hazards
import layout as L
from gen import header, footer, f32

LOG2E = 1.4426950408889634
import os
STAMPS = bool(os.environ.get('STAMPS'))

def gen_k1(KERNELS):
    name = "k1_qgu_kernel"
    a = Asm(); header(a, name, 256)
    a.stamps = STAMPS; a.stamp(0)
    NST = 10; SB = 16384
    ACC = 128; WF = 64; AF = 96
    a.e("s_load_dwordx2 s[4:5], s[0:1], 8")
    a.e("s_load_dwordx4 s[8:11], s[0:1], 48")
    a.e("s_load_dwordx2 s[12:13], s[0:1], 88")
    a.e("v_and_b32 v1, 63, v0")
    a.e("v_lshrrev_b32 v2, 6, v0")
    a.e("s_nop 0")
    a.e("v_readfirstlane_b32 s3, v2")
    a.e("s_and_b32 s14, s2, 7")
    a.e("s_lshr_b32 s15, s2, 3")
    a.e("s_and_b32 s16, s14, 1")
    a.e("s_lshl_b32 s16, s16, 2")
    a.e("s_and_b32 s17, s15, 3")
    a.e("s_add_u32 s16, s16, s17")
    a.e("s_lshr_b32 s17, s14, 1")
    a.e("s_lshl_b32 s17, s17, 3")
    a.e("s_lshr_b32 s18, s15, 2")
    a.e("s_add_u32 s17, s17, s18")
    a.e("s_lshr_b32 s19, s3, 1")
    a.e("s_waitcnt lgkmcnt(0)")
    a.e("s_cmp_eq_u32 s19, 0")
    a.e("s_cselect_b32 s20, s8, s10")
    a.e("s_cselect_b32 s21, s9, s11")
    a.e("s_lshl_b32 s22, s17, 7")
    a.e("s_mov_b32 s23, 3456")
    a.e("s_cmp_lt_u32 s17, 27")
    a.e("s_cbranch_scc1 L_k1_ffn0")
    a.e("s_mov_b32 s20, s4")
    a.e("s_mov_b32 s21, s5")
    a.e("s_sub_u32 s22, s17, 27")
    a.e("s_lshl_b32 s22, s22, 8")
    a.e("s_lshl_b32 s24, s19, 7")
    a.e("s_add_u32 s22, s22, s24")
    a.e("s_mov_b32 s23, 1280")
    a.label("L_k1_ffn0")
    a.e("s_and_b32 s24, s3, 1")
    a.e("s_mul_i32 s24, s24, s23")
    a.e("s_lshl_b32 s24, s24, 5")
    a.e("s_add_u32 s22, s22, s24")
    a.e("s_add_u32 s20, s20, s22")
    a.e("s_addc_u32 s21, s21, 0")
    a.e("s_lshl_b32 s25, s23, 3")
    a.e("s_lshl_b32 s26, s23, 6")
    a.e("v_lshrrev_b32 v2, 5, v1")
    a.e("v_lshlrev_b32 v2, 2, v2")
    a.e("v_bfe_u32 v3, v1, 2, 2")
    a.e("v_add_u32 v2, v2, v3")
    a.e("v_mul_lo_u32 v2, v2, s23")
    a.e("v_bfe_u32 v3, v1, 4, 1")
    a.e("v_lshl_add_u32 v2, v3, 6, v2")
    a.e("v_and_b32 v3, 3, v1")
    a.e("v_lshl_add_u32 v2, v3, 4, v2")
    a.e("s_lshl_b32 s27, s3, 12")
    a.e("v_lshrrev_b32 v3, 5, v1")
    a.e("v_lshlrev_b32 v3, 9, v3")
    a.e("v_bfe_u32 v4, v1, 2, 2")
    a.e("v_lshl_add_u32 v3, v4, 6, v3")
    a.e("v_bfe_u32 v4, v1, 4, 1")
    a.e("v_lshl_add_u32 v3, v4, 5, v3")
    a.e("v_and_b32 v4, 3, v1")
    a.e("v_lshl_add_u32 v3, v4, 3, v3")
    a.e("v_lshlrev_b32 v1, 4, v1")
    a.e("s_lshl_b32 s28, s16, 3")
    a.e("s_lshl_b32 s29, s3, 1")
    a.e("s_add_u32 s28, s28, s29")
    a.e("s_mul_i32 s29, s28, 40960")
    a.e(f"s_add_u32 s29, s29, {L.WS_XN}")
    a.e("s_add_u32 s30, s12, s29")
    a.e("s_addc_u32 s31, s13, 0")
    a.e("s_add_u32 s32, s30, 40960")
    a.e("s_addc_u32 s33, s31, 0")
    def dma_stage(st):
        for qp in range(4):
            if qp == 0:
                a.e("s_mov_b32 s34, s20"); a.e("s_mov_b32 s35, s21")
            else:
                a.e("s_add_u32 s34, s34, s25"); a.e("s_addc_u32 s35, s35, 0")
            a.e(f"s_add_u32 m0, s27, {(st%3)*SB + qp*1024}")
            a.e("s_nop 0")
            a.vmem("global_load_lds_dwordx4 v2, s[34:35]", ("dma", st))
        a.e("s_add_u32 s20, s20, s26"); a.e("s_addc_u32 s21, s21, 0")
    def act_load(ks):
        sl = AF + 8*(ks % 4)
        a.vmem(f"global_load_dwordx4 v[{sl}:{sl+3}], v1, s[30:31] offset:{(ks%4)*1024}", ("act", ks))
        a.vmem(f"global_load_dwordx4 v[{sl+4}:{sl+7}], v1, s[32:33] offset:{(ks%4)*1024}", ("act", ks))
        if ks % 4 == 3:
            a.e("s_add_u32 s30, s30, 4096"); a.e("s_addc_u32 s31, s31, 0")
            a.e("s_add_u32 s32, s32, 4096"); a.e("s_addc_u32 s33, s33, 0")
    def tr_reads(ks):
        st = ks // 4; k4 = ks % 4; w = WF + 16*(ks % 2)
        for t in range(4):
            for which in range(2):
                off = (st % 3)*SB + (t//2)*8192 + (4*k4 + 2*which)*512 + (t % 2)*256
                a.lds(f"ds_read_b64_tr_b16 v[{w+4*t+2*which}:{w+4*t+2*which+1}], v3 offset:{off}", ("w", ks))
    dma_stage(0)
    for ks in range(3): act_load(ks)
    dma_stage(1); dma_stage(2)
    for i in range(128): a.e(f"v_mov_b32 v{ACC+i}, 0")
    a.stamp(1)
    a.wait(vm=("dma", 0))
    a.e("s_barrier")
    a.stamp(2)
    tr_reads(0)
    for ks in range(40):
        st = ks // 4
        if ks % 4 == 0 and ks: a.stamp(2 + ks//4)
        if ks % 4 == 3 and st + 1 < NST:
            a.wait(vm=("dma", st+1), lg="all")
            a.e("s_barrier")
        if ks + 1 < 40: tr_reads(ks+1)
        if ks % 4 == 3 and st + 3 < NST: dma_stage(st+3)
        if ks + 3 < 40: act_load(ks+3)
        a.wait(vm=("act", ks), lg=("w", ks))
        w = WF + 16*(ks % 2); sl = AF + 8*(ks % 4)
        for t in range(4):
            for r in range(2):
                d = ACC + 16*(4*r + t)
                a.e(f"v_mfma_f32_32x32x16_bf16 v[{d}:{d+15}], v[{w+4*t}:{w+4*t+3}], v[{sl+4*r}:{sl+4*r+3}], v[{d}:{d+15}]")
    a.e("s_nop 15")
    a.stamp(12)
    a.e("s_cmp_lt_u32 s17, 27")
    a.e("s_cbranch_scc1 L_k1_ffn1")
    a.e("s_sub_u32 s22, s17, 27")
    a.e("s_lshl_b32 s22, s22, 13")
    a.e("s_mul_i32 s29, s28, 40960")
    a.e("s_add_u32 s29, s29, s22")
    a.e(f"s_add_u32 s29, s29, {L.WS_Q}")
    a.e("s_add_u32 s30, s12, s29")
    a.e("s_addc_u32 s31, s13, 0")
    for r in range(2):
        for t in range(4):
            d = ACC + 16*(4*r + t); o = 64 + 8*((4*r+t) % 4)
            for i in range(8): a.e(f"v_cvt_pk_bf16_f32 v{o+i}, v{d+2*i}, v{d+2*i+1}")
            off = r*40960 + t*2048
            a.e(f"v_add_u32 v{4+(4*r+t)%4}, {off}, v1")
            a.e(f"global_store_dwordx4 v{4+(4*r+t)%4}, v[{o}:{o+3}], s[30:31]")
            a.e(f"global_store_dwordx4 v{4+(4*r+t)%4}, v[{o+4}:{o+7}], s[30:31] offset:1024")
    a.e("s_endpgm")
    a.label("L_k1_ffn1")
    a.e("s_lshl_b32 s22, s17, 12")
    a.e(f"s_mul_i32 s29, s28, {148*1024}")
    a.e("s_add_u32 s29, s29, s22")
    a.e(f"s_add_u32 s29, s29, {L.WS_A3 + 40*1024}")
    a.e("s_add_u32 s30, s12, s29")
    a.e("s_addc_u32 s31, s13, 0")
    a.e(f"s_mov_b32 s36, {f32(-LOG2E)}")
    for r in range(2):
        for p in range(2):
            g = ACC + 16*(4*r + p); u = ACC + 16*(4*r + 2 + p); o = 64 + 8*(2*r+p); t0 = 96
            for half in range(2):
                idx = range(8*half, 8*half+8)
                for i in idx: a.e(f"v_mul_f32 v{t0+i}, s36, v{g+i}")
                for i in idx: a.e(f"v_exp_f32 v{t0+i}, v{t0+i}")
                for i in idx: a.e(f"v_mul_f32 v{g+i}, v{g+i}, v{u+i}")
                for i in idx: a.e(f"v_add_f32 v{t0+i}, 1.0, v{t0+i}")
                for i in idx: a.e(f"v_rcp_f32 v{t0+i}, v{t0+i}")
                a.e("s_nop 0")
                for i in idx: a.e(f"v_mul_f32 v{g+i}, v{g+i}, v{t0+i}")
            for i in range(8): a.e(f"v_cvt_pk_bf16_f32 v{o+i}, v{g+2*i}, v{g+2*i+1}")
            off = r*148*1024 + p*2048
            a.e(f"v_add_u32 v{4+2*r+p}, {off}, v1")
            a.e(f"global_store_dwordx4 v{4+2*r+p}, v[{o}:{o+3}], s[30:31]")
            a.e(f"global_store_dwordx4 v{4+2*r+p}, v[{o+4}:{o+7}], s[30:31] offset:1024")
    a.stamp(13)
    a.e("s_waitcnt vmcnt(0)")
    a.stamp(14)
    a.stamp_dump(12, 3, 4, 0x2000000)
    footer(a, name)
    KERNELS.append((name, a.text(), 256, 256, 3*SB, 256, 100))

def gen(KERNELS):
    gen_k1(KERNELS)
    try:
        import gen_attn
        gen_attn.gen(KERNELS)
        import gen_k3
        gen_k3.gen(KERNELS)
    except ImportError:
        pass
```

```python
import sys, struct
sys.path.insert(0, "work")
from asmlib import Asm, check_hazards
import layout as L

def f32(x): return "0x%08x" % struct.unpack("<I", struct.pack("<f", x))[0]
KERNELS = []

def header(a, name, nwg):
    a.lines.append(f".globl {name}\n.p2align 8\n.type {name},@function\n{name}:")
    a.e(f"s_cmp_ge_u32 s2, {nwg}")
    a.e(f"s_cbranch_scc1 L_{name}_end")
def footer(a, name):
    a.label(f"L_{name}_end")
    a.e("s_endpgm")

def reduce32(a, v, t):
    for sh in (8, 4, 2, 1):
        a.e("s_nop 1")
        a.e(f"v_add_f32_dpp v{v}, v{v}, v{v} row_ror:{sh} row_mask:0xf bank_mask:0xf")
    a.e(f"v_mov_b32 v{t}, v{v}")
    a.e("s_nop 1")
    a.e(f"v_permlane16_swap_b32 v{v}, v{t}")
    a.e(f"v_add_f32 v{v}, v{v}, v{t}")

def gen_k0():
    name = "k0_ln_kv_kernel"
    a = Asm(); header(a, name, 128)
    XNI = 0; WOFF = 20480
    a.e("s_load_dwordx2 s[4:5], s[0:1], 0")
    a.e("s_load_dwordx4 s[8:11], s[0:1], 16")
    a.e("s_load_dwordx2 s[12:13], s[0:1], 88")
    a.e("v_and_b32 v1, 63, v0")
    a.e("v_lshrrev_b32 v2, 6, v0")
    a.e("v_and_b32 v3, 31, v0")
    a.e("v_readfirstlane_b32 s3, v2")
    a.e("v_lshrrev_b32 v4, 5, v0")
    a.e("s_lshl_b32 s16, s2, 4")
    a.e("v_add_u32 v5, s16, v4")
    a.e("v_mul_u32_u24 v5, 1280, v5")
    a.e("v_lshl_add_u32 v6, v3, 4, v5")
    a.e("v_lshl_add_u32 v7, v3, 3, v5")
    a.e("v_lshlrev_b32 v8, 4, v1")
    a.e("s_waitcnt lgkmcnt(0)")
    a.vmem("global_load_dwordx4 v[10:13], v6, s[4:5]", "x")
    a.vmem("global_load_dwordx4 v[14:17], v6, s[4:5] offset:512", "x")
    a.vmem("global_load_dwordx2 v[18:19], v7, s[4:5] offset:1024", "x")
    a.e("s_sub_u32 s14, s10, 25600")
    a.e("s_subb_u32 s15, s11, 0")
    for j in range(7):
        a.e(f"s_add_u32 s20, s3, {8*j}")
        if j == 6:
            a.e("s_cmp_lt_u32 s20, 50")
            a.e("s_cbranch_scc0 L_k0_nodma")
        a.e("s_lshl_b32 s21, s20, 10")
        a.e("s_cmp_lt_u32 s20, 25")
        a.e("s_cselect_b32 s22, s8, s14")
        a.e("s_cselect_b32 s23, s9, s15")
        a.e("s_add_u32 s22, s22, s21")
        a.e("s_addc_u32 s23, s23, 0")
        a.e(f"s_add_u32 m0, s21, {WOFF}")
        a.e("s_nop 0")
        a.vmem("global_load_lds_dwordx4 v8, s[22:23]", "w")
    a.label("L_k0_nodma")
    a.e("s_waitcnt vmcnt(6)")
    a.vm = []
    for i in range(10):
        a.e(f"v_lshlrev_b32 v{20+2*i}, 16, v{10+i}")
        a.e(f"v_and_b32 v{21+2*i}, 0xffff0000, v{10+i}")
    a.e("v_add_f32 v40, v20, v21")
    a.e("v_add_f32 v41, v22, v23")
    for i in range(2, 10, 2):
        a.e(f"v_add_f32 v40, v40, v{20+2*i}")
        a.e(f"v_add_f32 v41, v41, v{21+2*i}")
        a.e(f"v_add_f32 v40, v40, v{22+2*i}")
        a.e(f"v_add_f32 v41, v41, v{23+2*i}")
    a.e("v_add_f32 v40, v40, v41")
    reduce32(a, 40, 41)
    a.e(f"v_mul_f32 v40, {f32(1.0/640)}, v40")
    a.e("v_mov_b32 v42, 0")
    a.e("v_mov_b32 v43, 0")
    for i in range(10):
        a.e(f"v_sub_f32 v44, v{20+2*i}, v40")
        a.e(f"v_sub_f32 v45, v{21+2*i}, v40")
        a.e("v_fma_f32 v42, v44, v44, v42")
        a.e("v_fma_f32 v43, v45, v45, v43")
    a.e("v_add_f32 v42, v42, v43")
    reduce32(a, 42, 43)
    a.e(f"v_mul_f32 v42, {f32(1.0/640)}, v42")
    a.e("v_cvt_pk_bf16_f32 v40, v40, v40")
    a.e("v_and_b32 v40, 0xffff0000, v40")
    a.e("v_cvt_pk_bf16_f32 v42, v42, v42")
    a.e("v_and_b32 v42, 0xffff0000, v42")
    a.e(f"v_add_f32 v42, {f32(1e-5)}, v42")
    a.e("v_cvt_pk_bf16_f32 v42, v42, v42")
    a.e("v_and_b32 v42, 0xffff0000, v42")
    a.e("v_sqrt_f32 v42, v42")
    a.e("s_nop 0")
    a.e("v_cvt_pk_bf16_f32 v42, v42, v42")
    a.e("v_and_b32 v42, 0xffff0000, v42")
    a.e("v_rcp_f32 v43, v42")
    a.e("s_nop 0")
    a.e("v_fma_f32 v44, -v42, v43, 1.0")
    a.e("v_fma_f32 v43, v43, v44, v43")
    for i in range(10):
        a.e(f"v_sub_f32 v44, v{20+2*i}, v40")
        a.e(f"v_sub_f32 v45, v{21+2*i}, v40")
        a.e("v_cvt_pk_bf16_f32 v44, v44, v45")
        a.e("v_and_b32 v45, 0xffff0000, v44")
        a.e("v_lshlrev_b32 v44, 16, v44")
        a.e("v_mul_f32 v45, v45, v43")
        a.e("v_mul_f32 v44, v44, v43")
        a.e(f"v_cvt_pk_bf16_f32 v{10+i}, v44, v45")
    a.e("v_lshrrev_b32 v44, 1, v3")
    a.e("v_lshlrev_b32 v44, 9, v44")
    a.e("v_lshl_add_u32 v44, v4, 4, v44")
    a.e("v_and_b32 v45, 1, v3")
    a.e("v_lshl_add_u32 v44, v45, 3, v44")
    a.lds(f"ds_write_b64 v44, v[10:11] offset:{XNI}")
    a.lds(f"ds_write_b64 v44, v[12:13] offset:{XNI+256}")
    a.lds(f"ds_write_b64 v44, v[14:15] offset:{XNI+8192}")
    a.lds(f"ds_write_b64 v44, v[16:17] offset:{XNI+8192+256}")
    a.e("v_lshrrev_b32 v46, 2, v3")
    a.e("v_lshlrev_b32 v46, 9, v46")
    a.e("v_lshl_add_u32 v46, v4, 4, v46")
    a.e("v_lshl_add_u32 v46, v45, 8, v46")
    a.e("v_bfe_u32 v47, v3, 1, 1")
    a.e("v_lshl_add_u32 v46, v47, 3, v46")
    a.lds(f"ds_write_b64 v46, v[18:19] offset:{XNI+32*512}")
    a.e("s_waitcnt vmcnt(0) lgkmcnt(0)"); a.lg = []
    a.e("s_barrier")
    a.e("s_cmp_ge_u32 s3, 4")
    a.e("s_cbranch_scc1 L_k0_copy")
    a.e("v_and_b32 v9, 15, v1")
    a.e("v_lshrrev_b32 v10, 4, v1")
    a.e("v_lshrrev_b32 v11, 1, v10")
    a.e("v_and_b32 v12, 1, v10")
    a.e("v_lshlrev_b32 v13, 9, v11")
    a.e("v_lshl_add_u32 v13, v12, 8, v13")
    a.e("v_lshl_add_u32 v13, v9, 4, v13")
    a.e("v_lshlrev_b32 v14, 4, v11")
    a.e("v_lshl_add_u32 v14, v12, 2, v14")
    a.e("v_lshrrev_b32 v15, 2, v9")
    a.e("v_add_u32 v14, v14, v15")
    a.e("v_mul_u32_u24 v14, 40, v14")
    a.e("v_and_b32 v15, 3, v9")
    a.e("v_lshl_add_u32 v14, v15, 3, v14")
    a.e("s_lshr_b32 s20, s3, 1")
    a.e("s_and_b32 s21, s3, 1")
    a.e("s_mul_i32 s22, s20, 25600")
    a.e("s_lshl_b32 s23, s21, 5")
    a.e("s_add_u32 s22, s22, s23")
    a.e(f"s_add_u32 s22, s22, {WOFF}")
    a.e("v_add_u32 v14, s22, v14")
    for i in range(4): a.e(f"v_mov_b32 v{16+i}, 0")
    def kv_loop(isV):
        for b in range(5):
            for s4 in range(4):
                s = 4*b + s4
                r = 20 + 8*s4
                a.lds(f"ds_read_b128 v[{r}:{r+3}], v13 offset:{XNI + s*1024}", s4)
                a.lds(f"ds_read_b64_tr_b16 v[{r+4}:{r+5}], v14 offset:{s*1280}", s4)
                a.lds(f"ds_read_b64_tr_b16 v[{r+6}:{r+7}], v14 offset:{s*1280+320}", s4)
            for s4 in range(4):
                r = 20 + 8*s4
                a.wait(lg=s4)
                if isV: a.e(f"v_mfma_f32_16x16x32_bf16 v[16:19], v[{r}:{r+3}], v[{r+4}:{r+7}], v[16:19]")
                else:   a.e(f"v_mfma_f32_16x16x32_bf16 v[16:19], v[{r+4}:{r+7}], v[{r}:{r+3}], v[16:19]")
        a.e("s_nop 7"); a.e("s_nop 1")
    a.e("s_lshr_b32 s24, s2, 1")
    a.e("s_lshl_b32 s24, s24, 12")
    a.e(f"s_add_u32 s24, s24, {L.WS_KV}")
    a.e("s_add_u32 s26, s12, s24")
    a.e("s_addc_u32 s27, s13, 0")
    a.e("s_and_b32 s25, s2, 1")
    a.e("s_cmp_eq_u32 s20, 1")
    a.e("s_cbranch_scc1 L_k0_v")
    kv_loop(False)
    a.e("v_cvt_pk_bf16_f32 v20, v16, v17")
    a.e("v_cvt_pk_bf16_f32 v21, v18, v19")
    a.e(f"s_mov_b32 s28, {f32(L.CSCALE)}")
    a.e("v_lshlrev_b32 v16, 16, v20"); a.e("v_and_b32 v17, 0xffff0000, v20")
    a.e("v_lshlrev_b32 v18, 16, v21"); a.e("v_and_b32 v19, 0xffff0000, v21")
    for i in range(4): a.e(f"v_mul_f32 v{16+i}, s28, v{16+i}")
    a.e("v_cvt_pk_bf16_f32 v20, v16, v17")
    a.e("v_cvt_pk_bf16_f32 v21, v18, v19")
    a.e("s_lshl_b32 s29, s25, 4")
    a.e("v_add_u32 v22, s29, v9")
    a.e("s_cmp_eq_u32 s21, 1")
    a.e("s_cbranch_scc1 L_k0_k2")
    a.e("v_lshl_add_u32 v23, v12, 5, v22")
    a.e("v_lshlrev_b32 v23, 4, v23")
    a.e("v_lshl_add_u32 v23, v11, 3, v23")
    a.e("global_store_dwordx2 v23, v[20:21], s[26:27]")
    a.e("s_endpgm")
    a.label("L_k0_k2")
    a.e("v_cmp_eq_u32 vcc, 1, v10")
    a.e("v_mov_b32 v24, 0x3f803f80")
    a.e("v_mov_b32 v25, 0x3f80")
    a.e("v_cndmask_b32 v20, v20, v24, vcc")
    a.e("v_cndmask_b32 v21, v21, v25, vcc")
    a.e("v_lshl_add_u32 v23, v10, 5, v22")
    a.e("v_lshlrev_b32 v23, 3, v23")
    a.e("s_mov_b64 exec, 0xffffffff")
    a.e("global_store_dwordx2 v23, v[20:21], s[26:27] offset:3072")
    a.e("s_endpgm")
    a.label("L_k0_v")
    a.lg = []
    kv_loop(True)
    a.e("v_cvt_pk_bf16_f32 v20, v16, v17")
    a.e("v_cvt_pk_bf16_f32 v21, v18, v19")
    a.e("s_lshl_b32 s29, s21, 4")
    a.e("v_add_u32 v22, s29, v9")
    a.e("v_cmp_le_u32 vcc, 20, v22")
    a.e("s_nop 1")
    a.e("v_cndmask_b32 v20, v20, 0, vcc")
    a.e("v_cndmask_b32 v21, v21, 0, vcc")
    a.e("v_and_b32 v24, 0x1b, v22")
    a.e("v_cmp_eq_u32 vcc, 24, v24")
    a.e("v_mov_b32 v24, 0x3f803f80")
    a.e("s_nop 0")
    a.e("v_cndmask_b32 v20, v20, v24, vcc")
    a.e("v_cndmask_b32 v21, v21, v24, vcc")
    a.e("v_lshl_add_u32 v23, v12, 5, v22")
    a.e("v_lshlrev_b32 v23, 4, v23")
    a.e("v_lshl_add_u32 v23, v11, 3, v23")
    a.e("s_lshl_b32 s29, s25, 10")
    a.e("v_add_u32 v23, s29, v23")
    a.e("global_store_dwordx2 v23, v[20:21], s[26:27] offset:1024")
    a.e("s_endpgm")
    a.label("L_k0_copy")
    a.lg = []
    a.e("s_sub_u32 s20, s3, 4")
    a.e("s_mul_i32 s20, s20, 5120")
    a.e("v_add_u32 v9, s20, v8")
    for i in range(5):
        a.lds(f"ds_read_b128 v[{20+4*i}:{23+4*i}], v9 offset:{XNI + i*1024}", i)
    a.e("s_lshr_b32 s21, s2, 1")
    a.e("s_mul_i32 s21, s21, 40960")
    a.e("s_and_b32 s22, s2, 1")
    a.e("s_lshl_b32 s22, s22, 8")
    a.e("s_add_u32 s21, s21, s22")
    a.e(f"s_add_u32 s21, s21, {L.WS_XN}")
    a.e("s_add_u32 s24, s12, s21")
    a.e("s_addc_u32 s25, s13, 0")
    a.e("v_and_b32 v10, 0xff, v9")
    a.e("v_lshrrev_b32 v11, 8, v9")
    a.e("v_lshl_add_u32 v10, v11, 9, v10")
    for i in range(5):
        a.wait(lg=i)
        a.e(f"global_store_dwordx4 v10, v[{20+4*i}:{23+4*i}], s[24:25] offset:{i*2048 if i < 2 else 0}") if i < 2 else None
        if i >= 2:
            a.e(f"v_add_u32 v{10+i}, {i*2048}, v10")
            a.e(f"global_store_dwordx4 v{10+i}, v[{20+4*i}:{23+4*i}], s[24:25]")
    footer(a, name)
    KERNELS.append((name, a.text(), 128, 512, 72704, 64, 40))

def emit(path, kernels):
    out = open("parallel_sum__grouped_kv_mqa__swiglu_ffn__prompt.s.ref").read().split("; Override launch")[0]
    for (name, text, grid, block, lds, vg, sg) in kernels:
        out += f"; @launch kernel={name} grid=({grid},1,1) block=({block},1,1) lds={lds}\n"
    out += '.amdgcn_target "amdgcn-amd-amdhsa--gfx950"\n.text\n'
    seen = set()
    for (name, text, grid, block, lds, vg, sg) in kernels:
        if name in seen: continue
        seen.add(name); out += text
        check_hazards(text, name)
    out += '.section .rodata,"a"\n'
    seen = set()
    for (name, text, grid, block, lds, vg, sg) in kernels:
        if name in seen: continue
        seen.add(name)
        acc = (min(vg, 256) + 3)//4*4
        out += f""".p2align 6
.amdhsa_kernel {name}
  .amdhsa_next_free_vgpr {vg}
  .amdhsa_next_free_sgpr {sg}
  .amdhsa_accum_offset {acc}
  .amdhsa_group_segment_fixed_size 0
  .amdhsa_kernarg_size 96
  .amdhsa_user_sgpr_count 2
  .amdhsa_user_sgpr_kernarg_segment_ptr 1
  .amdhsa_system_sgpr_workgroup_id_x 1
  .amdhsa_float_denorm_mode_32 3
.end_amdhsa_kernel
"""
    open(path, "w").write(out)

if __name__ == "__main__":
    gen_k0()
    try:
        import gen_rest
        gen_rest.gen(KERNELS)
    except ImportError:
        pass
    emit(sys.argv[1] if len(sys.argv) > 1 else "k.s", KERNELS)
```
